```python
import torch

def _softmax(x, axis=-1):
    return torch.softmax(x, dim=axis)
def _gelu(x):
    return torch.nn.functional.gelu(x, approximate="tanh")
def _silu(x):
    return torch.nn.functional.silu(x)
def _sigmoid(x):
    return torch.sigmoid(x)
def _layernorm(x, axis=-1, eps=1e-5):
    m = x.mean(dim=axis, keepdim=True)
    v = x.var(dim=axis, keepdim=True, unbiased=False)
    return (x - m) / torch.sqrt(v + eps)
def _scatter_add(tgt, idx, src, axis=0):
    return tgt.clone().index_add_(axis, idx, src)
def _segment_sum(src, seg, n):
    out = torch.zeros((n,) + src.shape[1:], dtype=src.dtype)
    return out.index_add_(0, seg, src)
def _pad(x, pw):
    flat = tuple(v for pair in reversed(pw) for v in pair)
    return torch.nn.functional.pad(x, flat)

kernel_name = 'standalone__softmax_full_bidir__decode'

def setup_inputs():

    _w = (lambda a: (lambda t: t.to(torch.bfloat16) if t.is_floating_point() else t)(torch.as_tensor(a)))
    B, H, Sq, Skv, Dh = 1, 32, 1, 32768, 192
    return {
        "q": _w((lambda *s: torch.randn(*s, dtype=torch.bfloat16) * 0.8)(B, H, Sq, Dh)),
        "k": _w((lambda *s: torch.randn(*s, dtype=torch.bfloat16) * 0.8)(B, H, Skv, Dh)),
        "v": _w((lambda *s: torch.randn(*s, dtype=torch.bfloat16) * 0.05)(B, H, Skv, Dh)),
    }

def reference(q, k, v):
    scale = q.shape[-1] ** -0.5
    scores = torch.einsum('bhqd,bhkd->bhqk', q, k) * scale
    attn = _softmax(scores, axis=-1)
    return torch.einsum('bhqk,bhkd->bhqd', attn, v)
```

```python
import sys, math

D = 5
NT = True
NST = 32

KBYTES = 402653184
WS_O = 0
WS_ML = 1 << 20

def gen(out):
    L = []
    A = L.append
    nt = " nt" if NT else ""
    hdr = open('standalone__softmax_full_bidir__decode.s.ref').read().split('\n')
    for ln in hdr:
        if ln.startswith('; @launch'):
            break
        A(ln)
    A("; @launch kernel=attn_part_kernel grid=(1024,1,1) block=(256,1,1) lds=25088")
    A("; @launch kernel=attn_comb_kernel grid=(32,1,1) block=(256,1,1) lds=0")
    A('.amdgcn_target "amdgcn-amd-amdhsa--gfx950"')
    A('.text')
    A('.globl attn_part_kernel')
    A('.p2align 8')
    A('.type attn_part_kernel,@function')
    A('attn_part_kernel:')
    A('  s_cmp_ge_u32 s2, 1024')
    A('  s_cbranch_scc1 L_part_end')
    A('  s_load_dwordx2 s[4:5], s[0:1], 0       ; q')
    A('  s_load_dwordx2 s[8:9], s[0:1], 8       ; k')
    A('  s_load_dwordx2 s[12:13], s[0:1], 16    ; v')
    A('  s_load_dwordx2 s[16:17], s[0:1], 40    ; ws')
    A('  v_lshrrev_b32 v2, 6, v0')
    A('  v_and_b32 v3, 63, v0                   ; lane')
    A('  v_readfirstlane_b32 s20, v2')
    A('  v_lshrrev_b32 v2, 3, v3')
    A('  v_and_b32 v3, 7, v3                    ; p = lane&7')
    A('  v_mul_u32_u24 v1, 384, v2')
    A('  v_lshl_add_u32 v1, v3, 4, v1')
    A('  s_lshl_b32 s21, s2, 2')
    A('  s_add_u32 s21, s21, s20                ; b*4+w')
    A('  s_mul_i32 s22, s21, 98304')
    A('  s_lshr_b32 s23, s2, 5                  ; head')
    A('  s_mul_i32 s23, s23, 384')
    A('  v_lshlrev_b32 v120, 4, v3              ; p*16')
    A('  s_waitcnt lgkmcnt(0)')
    A('  s_mov_b32 s6, 12288')
    A('  s_mov_b32 s7, 0x00020000')
    A('  s_mov_b32 s10, %d' % KBYTES)
    A('  s_mov_b32 s11, 0x00020000')
    A('  s_mov_b32 s14, %d' % KBYTES)
    A('  s_mov_b32 s15, 0x00020000')
    A('  s_mov_b32 s18, %d' % (WS_ML + 8192))
    A('  s_mov_b32 s19, 0x00020000')
    for j in range(3):
        A('  buffer_load_dwordx4 v[%d:%d], v120, s[4:7], s23 offen offset:%d' % (4+4*j, 7+4*j, 128*j))
    SC = 28
    BUF = 60
    def bufreg(stage):
        return BUF + 12*(stage % D)
    A('  s_mov_b32 s24, s22')
    def issue(stage):
        srd = 's[8:11]' if stage < NST else 's[12:15]'
        if stage == NST:
            A('  s_mov_b32 s24, s22')
        b = bufreg(stage)
        for j in range(3):
            A('  buffer_load_dwordx4 v[%d:%d], v1, %s, s24 offen offset:%d%s' % (b+4*j, b+4*j+3, srd, 128*j, nt))
        A('  s_add_u32 s24, s24, 3072')
    for st in range(D):
        issue(st)
    total = 2*NST
    for st in range(total):
        remaining = min(total-1, st+D-1) - st
        A('  s_waitcnt vmcnt(%d)' % (3*remaining))
        b = bufreg(st)
        if st < NST:
            s = SC + st
            A('  v_mov_b32 v%d, 0' % s)
            for k in range(12):
                A('  v_dot2c_f32_bf16 v%d, v%d, v%d' % (s, b+k, 4+k))
            if st == NST-1:
                for mode in ('quad_perm:[1,0,3,2]', 'quad_perm:[2,3,0,1]', 'row_half_mirror'):
                    for i in range(NST):
                        A('  v_add_f32_dpp v%d, v%d, v%d %s row_mask:0xf bank_mask:0xf' % (SC+i, SC+i, SC+i, mode))
                c = (192 ** -0.5) * math.log2(math.e)
                import struct
                cb = struct.unpack('<I', struct.pack('<f', c))[0]
                A('  s_mov_b32 s25, 0x%08x' % cb)
                for i in range(NST):
                    A('  v_mul_f32 v%d, s25, v%d' % (SC+i, SC+i))
                A('  v_max3_f32 v121, v%d, v%d, v%d' % (SC, SC+1, SC+2))
                i = 3
                while i < NST:
                    if i+1 < NST:
                        A('  v_max3_f32 v121, v121, v%d, v%d' % (SC+i, SC+i+1)); i += 2
                    else:
                        A('  v_max_f32 v121, v121, v%d' % (SC+i)); i += 1
                for i in range(NST):
                    A('  v_sub_f32 v%d, v%d, v121' % (SC+i, SC+i))
                for i in range(NST):
                    A('  v_exp_f32 v%d, v%d' % (SC+i, SC+i))
                A('  s_nop 0')
                A('  v_add_f32 v122, v%d, v%d' % (SC, SC+1))
                for i in range(2, NST):
                    A('  v_add_f32 v122, v122, v%d' % (SC+i))
                for i in range(24):
                    A('  v_mov_b32 v%d, 0' % (4+i))
        else:
            g = st - NST
            p = SC + g
            for k in range(12):
                t0 = 123 + 2*(k % 2)
                A('  v_lshlrev_b32 v%d, 16, v%d' % (t0, b+k))
                A('  v_and_b32 v%d, 0xffff0000, v%d' % (t0+1, b+k))
                A('  v_fmac_f32 v%d, v%d, v%d' % (4+2*k, p, t0))
                A('  v_fmac_f32 v%d, v%d, v%d' % (4+2*k+1, p, t0+1))
        if st + D < total:
            issue(st + D)
    A('  v_lshrrev_b32 v2, 3, v0')
    A('  v_lshlrev_b32 v127, 2, v2')
    A('  ds_write_b32 v127, v121 offset:24576')
    A('  s_waitcnt lgkmcnt(0)')
    A('  s_barrier')
    A('  v_mov_b32 v126, 0')
    for i in range(8):
        A('  ds_read_b128 v[%d:%d], v126 offset:%d' % (60+4*i, 63+4*i, 24576+16*i))
    A('  s_waitcnt lgkmcnt(0)')
    A('  v_max3_f32 v125, v60, v61, v62')
    i = 63
    while i < 92:
        if i+1 < 92:
            A('  v_max3_f32 v125, v125, v%d, v%d' % (i, i+1)); i += 2
        else:
            A('  v_max_f32 v125, v125, v%d' % i); i += 1
    A('  v_sub_f32 v124, v121, v125             ; m_slot - M')
    A('  v_exp_f32 v124, v124')
    A('  s_nop 0')
    for i in range(24):
        A('  v_mul_f32 v%d, v124, v%d' % (4+i, 4+i))
    A('  v_mul_f32 v122, v124, v122')
    A('  v_mul_u32_u24 v126, 768, v2')
    A('  v_and_b32 v3, 7, v0')
    A('  v_lshl_add_u32 v126, v3, 5, v126')
    for j in range(3):
        A('  ds_write_b128 v126, v[%d:%d] offset:%d' % (4+8*j, 7+8*j, 256*j))
        A('  ds_write_b128 v126, v[%d:%d] offset:%d' % (8+8*j, 11+8*j, 256*j+16))
    A('  ds_write_b32 v127, v122 offset:24704')
    A('  s_waitcnt lgkmcnt(0)')
    A('  s_barrier')
    A('  v_cmp_gt_u32 vcc, 192, v0')
    A('  s_and_saveexec_b64 s[26:27], vcc')
    A('  s_cbranch_execz L_part_end')
    A('  v_lshlrev_b32 v126, 2, v0')
    for r in range(32):
        A('  ds_read_b32 v%d, v126 offset:%d' % (60+r, 768*r))
    A('  v_mov_b32 v127, 0')
    for i in range(8):
        A('  ds_read_b128 v[%d:%d], v127 offset:%d' % (92+4*i, 95+4*i, 24704+16*i))
    A('  s_waitcnt lgkmcnt(0)')
    for r in range(1, 32):
        A('  v_add_f32 v60, v60, v%d' % (60+r))
    for r in range(1, 32):
        A('  v_add_f32 v92, v92, v%d' % (92+r))
    A('  s_mul_i32 s28, s2, 768')
    A('  buffer_store_dword v60, v126, s[16:19], s28 offen')
    A('  v_mov_b32 v2, v125')
    A('  v_mov_b32 v3, v92')
    A('  v_cmp_eq_u32 vcc, 0, v0')
    A('  s_and_saveexec_b64 s[26:27], vcc')
    A('  s_cbranch_execz L_part_end')
    A('  s_lshl_b32 s28, s2, 3')
    A('  s_add_u32 s28, s28, %d' % WS_ML)
    A('  v_mov_b32 v126, 0')
    A('  buffer_store_dwordx2 v[2:3], v126, s[16:19], s28 offen')
    A('L_part_end:')
    A('  s_endpgm')
    A('.globl attn_comb_kernel')
    A('.p2align 8')
    A('.type attn_comb_kernel,@function')
    A('attn_comb_kernel:')
    A('  s_cmp_ge_u32 s2, 32')
    A('  s_cbranch_scc1 L_comb_end')
    A('  s_load_dwordx2 s[12:13], s[0:1], 24    ; out')
    A('  s_load_dwordx2 s[16:17], s[0:1], 40    ; ws')
    A('  v_cmp_gt_u32 vcc, 192, v0')
    A('  s_and_saveexec_b64 s[26:27], vcc')
    A('  s_cbranch_execz L_comb_end')
    A('  s_waitcnt lgkmcnt(0)')
    A('  s_mov_b32 s14, 12288')
    A('  s_mov_b32 s15, 0x00020000')
    A('  s_mov_b32 s18, %d' % (WS_ML + 8192))
    A('  s_mov_b32 s19, 0x00020000')
    A('  s_mul_i32 s20, s2, 24576')
    A('  s_lshl_b32 s21, s2, 8')
    A('  s_add_u32 s21, s21, %d' % WS_ML)
    A('  v_lshlrev_b32 v1, 2, v0')
    A('  v_mov_b32 v2, 0')
    for i in range(16):
        A('  buffer_load_dwordx4 v[%d:%d], v2, s[16:19], s21 offen offset:%d' % (4+4*i, 7+4*i, 16*i))
    for r in range(32):
        if r > 0 and r % 5 == 0:
            A('  s_add_u32 s20, s20, 3840')
        A('  buffer_load_dword v%d, v1, s[16:19], s20 offen offset:%d' % (68+r, 768*(r % 5)))
    A('  s_waitcnt vmcnt(32)')
    A('  v_max_f32 v3, v4, v6')
    for i in range(2, 32):
        A('  v_max_f32 v3, v3, v%d' % (4+2*i))
    for i in range(32):
        A('  v_sub_f32 v%d, v%d, v3' % (4+2*i, 4+2*i))
    for i in range(32):
        A('  v_exp_f32 v%d, v%d' % (4+2*i, 4+2*i))
    A('  s_nop 0')
    A('  v_mul_f32 v100, v4, v5')
    for i in range(1, 32):
        A('  v_fmac_f32 v100, v%d, v%d' % (4+2*i, 5+2*i))
    A('  s_waitcnt vmcnt(0)')
    A('  v_mul_f32 v101, v4, v68')
    for i in range(1, 32):
        A('  v_fmac_f32 v101, v%d, v%d' % (4+2*i, 68+i))
    A('  v_rcp_f32 v100, v100')
    A('  s_nop 0')
    A('  v_mul_f32 v101, v101, v100')
    A('  v_cvt_pk_bf16_f32 v101, v101, v101')
    A('  v_lshlrev_b32 v1, 1, v0')
    A('  s_mul_i32 s20, s2, 384')
    A('  buffer_store_short v101, v1, s[12:15], s20 offen')
    A('L_comb_end:')
    A('  s_endpgm')
    A('.section .rodata,"a"')
    for name, nv in (('attn_part_kernel', 128), ('attn_comb_kernel', 104)):
        A('.p2align 6')
        A('.amdhsa_kernel %s' % name)
        A('  .amdhsa_next_free_vgpr %d' % nv)
        A('  .amdhsa_next_free_sgpr 32')
        A('  .amdhsa_accum_offset %d' % nv)
        A('  .amdhsa_group_segment_fixed_size 0')
        A('  .amdhsa_kernarg_size 48')
        A('  .amdhsa_user_sgpr_count 2')
        A('  .amdhsa_user_sgpr_kernarg_segment_ptr 1')
        A('  .amdhsa_system_sgpr_workgroup_id_x 1')
        A('.end_amdhsa_kernel')
    open(out, 'w').write('\n'.join(L) + '\n')

gen(sys.argv[1] if len(sys.argv) > 1 else 'standalone__softmax_full_bidir__decode.s')
```

```python
import sys, math

D = int(__import__("os").environ.get("D", 5))
NT = int(__import__("os").environ.get("NT", 1))
SWEEP = int(__import__('os').environ.get('SWEEP', 0))
NST = 32

KBYTES = 402653184
WS_O = 0
WS_ML = 1 << 20

def gen(out):
    L = []
    A = L.append
    nt = " nt" if NT else ""
    hdr = open('standalone__softmax_full_bidir__decode.s.ref').read().split('\n')
    for ln in hdr:
        if ln.startswith('; @launch'):
            break
        A(ln)
    A("; @launch kernel=attn_part_kernel grid=(1024,1,1) block=(256,1,1) lds=25088")
    A("; @launch kernel=attn_comb_kernel grid=(32,1,1) block=(256,1,1) lds=0")
    A('.amdgcn_target "amdgcn-amd-amdhsa--gfx950"')
    A('.text')
    A('.globl attn_part_kernel')
    A('.p2align 8')
    A('.type attn_part_kernel,@function')
    A('attn_part_kernel:')
    A('  s_cmp_ge_u32 s2, 1024')
    A('  s_cbranch_scc1 L_part_end')
    A('  s_load_dwordx2 s[4:5], s[0:1], 0       ; q')
    A('  s_load_dwordx2 s[8:9], s[0:1], 8       ; k')
    A('  s_load_dwordx2 s[12:13], s[0:1], 16    ; v')
    A('  s_load_dwordx2 s[16:17], s[0:1], 40    ; ws')
    A('  v_lshrrev_b32 v2, 6, v0')
    A('  v_and_b32 v3, 63, v0                   ; lane')
    A('  v_readfirstlane_b32 s20, v2')
    A('  v_lshrrev_b32 v2, 3, v3')
    A('  v_and_b32 v3, 7, v3                    ; p = lane&7')
    A('  v_mul_u32_u24 v1, 384, v2')
    A('  v_lshl_add_u32 v1, v3, 4, v1')
    A('  s_lshl_b32 s21, s2, 2')
    A('  s_add_u32 s21, s21, s20                ; b*4+w')
    if SWEEP:
        A('  s_and_b32 s21, s21, 127')
        A('  s_mul_i32 s22, s21, 3072')
        A('  s_lshr_b32 s21, s2, 5')
        A('  s_mul_i32 s21, s21, 12582912')
        A('  s_add_u32 s22, s22, s21')
    else:
        A('  s_mul_i32 s22, s21, 98304')
    A('  s_lshr_b32 s23, s2, 5                  ; head')
    A('  s_mul_i32 s23, s23, 384')
    A('  v_lshlrev_b32 v120, 4, v3              ; p*16')
    A('  s_waitcnt lgkmcnt(0)')
    A('  s_mov_b32 s6, 12288')
    A('  s_mov_b32 s7, 0x00020000')
    A('  s_mov_b32 s10, %d' % KBYTES)
    A('  s_mov_b32 s11, 0x00020000')
    A('  s_mov_b32 s14, %d' % KBYTES)
    A('  s_mov_b32 s15, 0x00020000')
    A('  s_mov_b32 s18, %d' % (WS_ML + 8192))
    A('  s_mov_b32 s19, 0x00020000')
    for j in range(3):
        A('  buffer_load_dwordx4 v[%d:%d], v120, s[4:7], s23 offen offset:%d' % (4+4*j, 7+4*j, 128*j))
    SC = 28
    BUF = 60
    def bufreg(stage):
        return BUF + 12*(stage % D)
    A('  s_mov_b32 s24, s22')
    def issue(stage):
        srd = 's[8:11]' if stage < NST else 's[12:15]'
        if stage == NST:
            A('  s_mov_b32 s24, s22')
        b = bufreg(stage)
        for j in range(3):
            A('  buffer_load_dwordx4 v[%d:%d], v1, %s, s24 offen offset:%d%s' % (b+4*j, b+4*j+3, srd, 128*j, nt))
        A('  s_add_u32 s24, s24, %d' % (393216 if SWEEP else 3072))
    for st in range(D):
        issue(st)
    total = 2*NST
    for st in range(total):
        remaining = min(total-1, st+D-1) - st
        A('  s_waitcnt vmcnt(%d)' % (3*remaining))
        b = bufreg(st)
        if st < NST:
            s = SC + st
            A('  v_mov_b32 v%d, 0' % s)
            for k in range(12):
                A('  v_dot2c_f32_bf16 v%d, v%d, v%d' % (s, b+k, 4+k))
            if st == NST-1:
                for mode in ('quad_perm:[1,0,3,2]', 'quad_perm:[2,3,0,1]', 'row_half_mirror'):
                    for i in range(NST):
                        A('  v_add_f32_dpp v%d, v%d, v%d %s row_mask:0xf bank_mask:0xf' % (SC+i, SC+i, SC+i, mode))
                c = (192 ** -0.5) * math.log2(math.e)
                import struct
                cb = struct.unpack('<I', struct.pack('<f', c))[0]
                A('  s_mov_b32 s25, 0x%08x' % cb)
                for i in range(NST):
                    A('  v_mul_f32 v%d, s25, v%d' % (SC+i, SC+i))
                A('  v_max3_f32 v121, v%d, v%d, v%d' % (SC, SC+1, SC+2))
                i = 3
                while i < NST:
                    if i+1 < NST:
                        A('  v_max3_f32 v121, v121, v%d, v%d' % (SC+i, SC+i+1)); i += 2
                    else:
                        A('  v_max_f32 v121, v121, v%d' % (SC+i)); i += 1
                for i in range(NST):
                    A('  v_sub_f32 v%d, v%d, v121' % (SC+i, SC+i))
                for i in range(NST):
                    A('  v_exp_f32 v%d, v%d' % (SC+i, SC+i))
                A('  s_nop 0')
                A('  v_add_f32 v122, v%d, v%d' % (SC, SC+1))
                for i in range(2, NST):
                    A('  v_add_f32 v122, v122, v%d' % (SC+i))
                for i in range(24):
                    A('  v_mov_b32 v%d, 0' % (4+i))
        else:
            g = st - NST
            p = SC + g
            for k in range(12):
                t0 = 123 + 2*(k % 2)
                A('  v_lshlrev_b32 v%d, 16, v%d' % (t0, b+k))
                A('  v_and_b32 v%d, 0xffff0000, v%d' % (t0+1, b+k))
                A('  v_fmac_f32 v%d, v%d, v%d' % (4+2*k, p, t0))
                A('  v_fmac_f32 v%d, v%d, v%d' % (4+2*k+1, p, t0+1))
        if st + D < total:
            issue(st + D)
    A('  v_lshrrev_b32 v2, 3, v0')
    A('  v_lshlrev_b32 v127, 2, v2')
    A('  ds_write_b32 v127, v121 offset:24576')
    A('  s_waitcnt lgkmcnt(0)')
    A('  s_barrier')
    A('  v_mov_b32 v126, 0')
    for i in range(8):
        A('  ds_read_b128 v[%d:%d], v126 offset:%d' % (60+4*i, 63+4*i, 24576+16*i))
    A('  s_waitcnt lgkmcnt(0)')
    A('  v_max3_f32 v125, v60, v61, v62')
    i = 63
    while i < 92:
        if i+1 < 92:
            A('  v_max3_f32 v125, v125, v%d, v%d' % (i, i+1)); i += 2
        else:
            A('  v_max_f32 v125, v125, v%d' % i); i += 1
    A('  v_sub_f32 v124, v121, v125             ; m_slot - M')
    A('  v_exp_f32 v124, v124')
    A('  s_nop 0')
    for i in range(24):
        A('  v_mul_f32 v%d, v124, v%d' % (4+i, 4+i))
    A('  v_mul_f32 v122, v124, v122')
    A('  v_mul_u32_u24 v126, 768, v2')
    A('  v_and_b32 v3, 7, v0')
    A('  v_lshl_add_u32 v126, v3, 5, v126')
    for j in range(3):
        A('  ds_write_b128 v126, v[%d:%d] offset:%d' % (4+8*j, 7+8*j, 256*j))
        A('  ds_write_b128 v126, v[%d:%d] offset:%d' % (8+8*j, 11+8*j, 256*j+16))
    A('  ds_write_b32 v127, v122 offset:24704')
    A('  s_waitcnt lgkmcnt(0)')
    A('  s_barrier')
    A('  v_cmp_gt_u32 vcc, 192, v0')
    A('  s_and_saveexec_b64 s[26:27], vcc')
    A('  s_cbranch_execz L_part_end')
    A('  v_lshlrev_b32 v126, 2, v0')
    for r in range(32):
        A('  ds_read_b32 v%d, v126 offset:%d' % (60+r, 768*r))
    A('  v_mov_b32 v127, 0')
    for i in range(8):
        A('  ds_read_b128 v[%d:%d], v127 offset:%d' % (92+4*i, 95+4*i, 24704+16*i))
    A('  s_waitcnt lgkmcnt(0)')
    for r in range(1, 32):
        A('  v_add_f32 v60, v60, v%d' % (60+r))
    for r in range(1, 32):
        A('  v_add_f32 v92, v92, v%d' % (92+r))
    A('  s_mul_i32 s28, s2, 768')
    A('  buffer_store_dword v60, v126, s[16:19], s28 offen')
    A('  v_mov_b32 v2, v125')
    A('  v_mov_b32 v3, v92')
    A('  v_cmp_eq_u32 vcc, 0, v0')
    A('  s_and_saveexec_b64 s[26:27], vcc')
    A('  s_cbranch_execz L_part_end')
    A('  s_lshl_b32 s28, s2, 3')
    A('  s_add_u32 s28, s28, %d' % WS_ML)
    A('  v_mov_b32 v126, 0')
    A('  buffer_store_dwordx2 v[2:3], v126, s[16:19], s28 offen')
    A('L_part_end:')
    A('  s_endpgm')
    A('.globl attn_comb_kernel')
    A('.p2align 8')
    A('.type attn_comb_kernel,@function')
    A('attn_comb_kernel:')
    A('  s_cmp_ge_u32 s2, 32')
    A('  s_cbranch_scc1 L_comb_end')
    A('  s_load_dwordx2 s[12:13], s[0:1], 24    ; out')
    A('  s_load_dwordx2 s[16:17], s[0:1], 40    ; ws')
    A('  v_cmp_gt_u32 vcc, 192, v0')
    A('  s_and_saveexec_b64 s[26:27], vcc')
    A('  s_cbranch_execz L_comb_end')
    A('  s_waitcnt lgkmcnt(0)')
    A('  s_mov_b32 s14, 12288')
    A('  s_mov_b32 s15, 0x00020000')
    A('  s_mov_b32 s18, %d' % (WS_ML + 8192))
    A('  s_mov_b32 s19, 0x00020000')
    A('  s_mul_i32 s20, s2, 24576')
    A('  s_lshl_b32 s21, s2, 8')
    A('  s_add_u32 s21, s21, %d' % WS_ML)
    A('  v_lshlrev_b32 v1, 2, v0')
    A('  v_mov_b32 v2, 0')
    for i in range(16):
        A('  buffer_load_dwordx4 v[%d:%d], v2, s[16:19], s21 offen offset:%d' % (4+4*i, 7+4*i, 16*i))
    for r in range(32):
        if r > 0 and r % 5 == 0:
            A('  s_add_u32 s20, s20, 3840')
        A('  buffer_load_dword v%d, v1, s[16:19], s20 offen offset:%d' % (68+r, 768*(r % 5)))
    A('  s_waitcnt vmcnt(32)')
    A('  v_max_f32 v3, v4, v6')
    for i in range(2, 32):
        A('  v_max_f32 v3, v3, v%d' % (4+2*i))
    for i in range(32):
        A('  v_sub_f32 v%d, v%d, v3' % (4+2*i, 4+2*i))
    for i in range(32):
        A('  v_exp_f32 v%d, v%d' % (4+2*i, 4+2*i))
    A('  s_nop 0')
    A('  v_mul_f32 v100, v4, v5')
    for i in range(1, 32):
        A('  v_fmac_f32 v100, v%d, v%d' % (4+2*i, 5+2*i))
    A('  s_waitcnt vmcnt(0)')
    A('  v_mul_f32 v101, v4, v68')
    for i in range(1, 32):
        A('  v_fmac_f32 v101, v%d, v%d' % (4+2*i, 68+i))
    A('  v_rcp_f32 v100, v100')
    A('  s_nop 0')
    A('  v_mul_f32 v101, v101, v100')
    A('  v_cvt_pk_bf16_f32 v101, v101, v101')
    A('  v_lshlrev_b32 v1, 1, v0')
    A('  s_mul_i32 s20, s2, 384')
    A('  buffer_store_short v101, v1, s[12:15], s20 offen')
    A('L_comb_end:')
    A('  s_endpgm')
    A('.section .rodata,"a"')
    for name, nv in (('attn_part_kernel', 128), ('attn_comb_kernel', 104)):
        A('.p2align 6')
        A('.amdhsa_kernel %s' % name)
        A('  .amdhsa_next_free_vgpr %d' % nv)
        A('  .amdhsa_next_free_sgpr 32')
        A('  .amdhsa_accum_offset %d' % nv)
        A('  .amdhsa_group_segment_fixed_size 0')
        A('  .amdhsa_kernarg_size 48')
        A('  .amdhsa_user_sgpr_count 2')
        A('  .amdhsa_user_sgpr_kernarg_segment_ptr 1')
        A('  .amdhsa_system_sgpr_workgroup_id_x 1')
        A('.end_amdhsa_kernel')
    open(out, 'w').write('\n'.join(L) + '\n')

gen(sys.argv[1] if len(sys.argv) > 1 else 'standalone__softmax_full_bidir__decode.s')
```

```python
import sys, math

D = int(__import__("os").environ.get("D", 5))
NT = int(__import__("os").environ.get("NT", 1))
SWEEP = int(__import__('os').environ.get('SWEEP', 0))
STAMP = int(__import__('os').environ.get('STAMP', 0))
FUSED = int(__import__('os').environ.get('FUSED', 0))
NST = 32

KBYTES = 402653184
WS_O = 0
WS_ML = 1 << 20

def gen(out):
    L = []
    A = L.append
    nt = " nt" if NT else ""
    hdr = open('standalone__softmax_full_bidir__decode.s.ref').read().split('\n')
    for ln in hdr:
        if ln.startswith('; @launch'):
            break
        A(ln)
    KN = 'standalone__softmax_full_bidir__decode_kernel' if FUSED else 'attn_part_kernel'
    if FUSED:
        A("; @launch grid=(1024,1,1) block=(256,1,1) lds=25088")
    else:
        A("; @launch kernel=attn_part_kernel grid=(1024,1,1) block=(256,1,1) lds=25088")
        A("; @launch kernel=attn_comb_kernel grid=(32,1,1) block=(256,1,1) lds=0")
    A('.amdgcn_target "amdgcn-amd-amdhsa--gfx950"')
    A('.text')
    A('.globl %s' % KN)
    A('.p2align 8')
    A('.type %s,@function' % KN)
    A('%s:' % KN)
    A('  s_cmp_ge_u32 s2, 1024')
    A('  s_cbranch_scc1 L_part_end')
    if STAMP: A('  s_memrealtime s[34:35]')
    A('  s_load_dwordx2 s[4:5], s[0:1], 0       ; q')
    A('  s_load_dwordx2 s[8:9], s[0:1], 8       ; k')
    A('  s_load_dwordx2 s[12:13], s[0:1], 16    ; v')
    A('  s_load_dwordx2 s[16:17], s[0:1], 40    ; ws')
    A('  v_lshrrev_b32 v2, 6, v0')
    A('  v_and_b32 v3, 63, v0                   ; lane')
    A('  v_readfirstlane_b32 s20, v2')
    A('  v_lshrrev_b32 v2, 3, v3')
    A('  v_and_b32 v3, 7, v3                    ; p = lane&7')
    A('  v_mul_u32_u24 v1, 384, v2')
    A('  v_lshl_add_u32 v1, v3, 4, v1')
    A('  s_lshl_b32 s21, s2, 2')
    A('  s_add_u32 s21, s21, s20                ; b*4+w')
    if SWEEP:
        A('  s_and_b32 s21, s21, 127')
        A('  s_mul_i32 s22, s21, 3072')
        A('  s_lshr_b32 s21, s2, 5')
        A('  s_mul_i32 s21, s21, 12582912')
        A('  s_add_u32 s22, s22, s21')
    else:
        A('  s_mul_i32 s22, s21, 98304')
    A('  s_lshr_b32 s23, s2, 5                  ; head')
    A('  s_mul_i32 s23, s23, 384')
    A('  v_lshlrev_b32 v120, 4, v3              ; p*16')
    A('  s_waitcnt lgkmcnt(0)')
    A('  s_mov_b32 s6, 12288')
    A('  s_mov_b32 s7, 0x00020000')
    A('  s_mov_b32 s10, %d' % KBYTES)
    A('  s_mov_b32 s11, 0x00020000')
    A('  s_mov_b32 s14, %d' % KBYTES)
    A('  s_mov_b32 s15, 0x00020000')
    A('  s_mov_b32 s18, %d' % ((4<<20) if STAMP else (WS_ML + 8192)))
    A('  s_mov_b32 s19, 0x00020000')
    for j in range(3):
        A('  buffer_load_dwordx4 v[%d:%d], v120, s[4:7], s23 offen offset:%d' % (4+4*j, 7+4*j, 128*j))
    SC = 28
    BUF = 60
    def bufreg(stage):
        return BUF + 12*(stage % D)
    A('  s_mov_b32 s24, s22')
    def issue(stage):
        srd = 's[8:11]' if stage < NST else 's[12:15]'
        if stage == NST:
            A('  s_mov_b32 s24, s22')
        b = bufreg(stage)
        for j in range(3):
            A('  buffer_load_dwordx4 v[%d:%d], v1, %s, s24 offen offset:%d%s' % (b+4*j, b+4*j+3, srd, 128*j, nt))
        A('  s_add_u32 s24, s24, %d' % (393216 if SWEEP else 3072))
    for st in range(D):
        issue(st)
    total = 2*NST
    for st in range(total):
        remaining = min(total-1, st+D-1) - st
        A('  s_waitcnt vmcnt(%d)' % (3*remaining))
        b = bufreg(st)
        if st < NST:
            s = SC + st
            A('  v_mov_b32 v%d, 0' % s)
            for k in range(12):
                A('  v_dot2c_f32_bf16 v%d, v%d, v%d' % (s, b+k, 4+k))
            if st == NST-1:
                for mode in ('quad_perm:[1,0,3,2]', 'quad_perm:[2,3,0,1]', 'row_half_mirror'):
                    for i in range(NST):
                        A('  v_add_f32_dpp v%d, v%d, v%d %s row_mask:0xf bank_mask:0xf' % (SC+i, SC+i, SC+i, mode))
                c = (192 ** -0.5) * math.log2(math.e)
                import struct
                cb = struct.unpack('<I', struct.pack('<f', c))[0]
                A('  s_mov_b32 s25, 0x%08x' % cb)
                for i in range(NST):
                    A('  v_mul_f32 v%d, s25, v%d' % (SC+i, SC+i))
                A('  v_max3_f32 v121, v%d, v%d, v%d' % (SC, SC+1, SC+2))
                i = 3
                while i < NST:
                    if i+1 < NST:
                        A('  v_max3_f32 v121, v121, v%d, v%d' % (SC+i, SC+i+1)); i += 2
                    else:
                        A('  v_max_f32 v121, v121, v%d' % (SC+i)); i += 1
                for i in range(NST):
                    A('  v_sub_f32 v%d, v%d, v121' % (SC+i, SC+i))
                for i in range(NST):
                    A('  v_exp_f32 v%d, v%d' % (SC+i, SC+i))
                A('  s_nop 0')
                A('  v_add_f32 v122, v%d, v%d' % (SC, SC+1))
                for i in range(2, NST):
                    A('  v_add_f32 v122, v122, v%d' % (SC+i))
                for i in range(24):
                    A('  v_mov_b32 v%d, 0' % (4+i))
        else:
            g = st - NST
            p = SC + g
            for k in range(12):
                t0 = 123 + 2*(k % 2)
                A('  v_lshlrev_b32 v%d, 16, v%d' % (t0, b+k))
                A('  v_and_b32 v%d, 0xffff0000, v%d' % (t0+1, b+k))
                A('  v_fmac_f32 v%d, v%d, v%d' % (4+2*k, p, t0))
                A('  v_fmac_f32 v%d, v%d, v%d' % (4+2*k+1, p, t0+1))
        if st + D < total:
            issue(st + D)
    A('  v_lshrrev_b32 v2, 3, v0')
    A('  v_lshlrev_b32 v127, 2, v2')
    A('  ds_write_b32 v127, v121 offset:24576')
    A('  s_waitcnt lgkmcnt(0)')
    A('  s_barrier')
    A('  v_mov_b32 v126, 0')
    for i in range(8):
        A('  ds_read_b128 v[%d:%d], v126 offset:%d' % (60+4*i, 63+4*i, 24576+16*i))
    A('  s_waitcnt lgkmcnt(0)')
    A('  v_max3_f32 v125, v60, v61, v62')
    i = 63
    while i < 92:
        if i+1 < 92:
            A('  v_max3_f32 v125, v125, v%d, v%d' % (i, i+1)); i += 2
        else:
            A('  v_max_f32 v125, v125, v%d' % i); i += 1
    A('  v_sub_f32 v124, v121, v125             ; m_slot - M')
    A('  v_exp_f32 v124, v124')
    A('  s_nop 0')
    for i in range(24):
        A('  v_mul_f32 v%d, v124, v%d' % (4+i, 4+i))
    A('  v_mul_f32 v122, v124, v122')
    A('  v_mul_u32_u24 v126, 768, v2')
    A('  v_and_b32 v3, 7, v0')
    A('  v_lshl_add_u32 v126, v3, 5, v126')
    for j in range(3):
        A('  ds_write_b128 v126, v[%d:%d] offset:%d' % (4+8*j, 7+8*j, 256*j))
        A('  ds_write_b128 v126, v[%d:%d] offset:%d' % (8+8*j, 11+8*j, 256*j+16))
    A('  ds_write_b32 v127, v122 offset:24704')
    A('  s_waitcnt lgkmcnt(0)')
    A('  s_barrier')
    A('  v_cmp_gt_u32 vcc, 192, v0')
    A('  s_and_saveexec_b64 s[26:27], vcc')
    A('  s_cbranch_execz L_part_end')
    A('  v_lshlrev_b32 v126, 2, v0')
    for r in range(32):
        A('  ds_read_b32 v%d, v126 offset:%d' % (60+r, 768*r))
    A('  v_mov_b32 v127, 0')
    for i in range(8):
        A('  ds_read_b128 v[%d:%d], v127 offset:%d' % (92+4*i, 95+4*i, 24704+16*i))
    A('  s_waitcnt lgkmcnt(0)')
    for r in range(1, 32):
        A('  v_add_f32 v60, v60, v%d' % (60+r))
    for r in range(1, 32):
        A('  v_add_f32 v92, v92, v%d' % (92+r))
    if not FUSED:
        A('  s_mul_i32 s28, s2, 768')
        A('  buffer_store_dword v60, v126, s[16:19], s28 offen')
        A('  v_mov_b32 v2, v125')
        A('  v_mov_b32 v3, v92')
        A('  v_cmp_eq_u32 vcc, 0, v0')
        A('  s_and_saveexec_b64 s[26:27], vcc')
        A('  s_cbranch_execz L_part_end')
        A('  s_lshl_b32 s28, s2, 3')
        A('  s_add_u32 s28, s28, %d' % WS_ML)
        A('  v_mov_b32 v126, 0')
        A('  buffer_store_dwordx2 v[2:3], v126, s[16:19], s28 offen')
        if STAMP:
            A('  s_memrealtime s[36:37]')
            A('  s_waitcnt lgkmcnt(0)')
            A('  v_mov_b32 v4, s34')
            A('  v_mov_b32 v5, s35')
            A('  v_mov_b32 v6, s36')
            A('  v_mov_b32 v7, s37')
            A('  s_lshl_b32 s28, s2, 4')
            A('  s_add_u32 s28, s28, %d' % (2<<20))
            A('  buffer_store_dwordx4 v[4:7], v126, s[16:19], s28 offen')
    else:
        A('  s_mul_i32 s28, s2, 768')
        A('  buffer_store_dword v60, v126, s[16:19], s28 offen sc1')
        A('  v_mov_b32 v2, v125')
        A('  v_mov_b32 v3, v92')
        A('  s_mov_b64 s[30:31], exec')
        A('  v_cmp_eq_u32 vcc, 0, v0')
        A('  s_and_saveexec_b64 s[26:27], vcc')
        A('  s_cbranch_execz L_f_nost')
        A('  s_lshl_b32 s28, s2, 3')
        A('  s_add_u32 s28, s28, %d' % WS_ML)
        A('  v_mov_b32 v126, 0')
        A('  buffer_store_dwordx2 v[2:3], v126, s[16:19], s28 offen sc1')
        A('L_f_nost:')
        A('  s_mov_b64 exec, s[30:31]')
        A('  s_waitcnt vmcnt(0)')
        A('  s_barrier')
        A('  s_cmp_lg_u32 s20, 0')
        A('  s_cbranch_scc1 L_f_noat')
        A('  s_load_dwordx2 s[32:33], s[0:1], 32')
        A('  s_waitcnt lgkmcnt(0)')
        A('  s_mov_b32 s34, 256')
        A('  s_mov_b32 s35, 0x00020000')
        A('  s_lshr_b32 s28, s2, 5')
        A('  s_lshl_b32 s28, s28, 2')
        A('  v_cmp_eq_u32 vcc, 0, v0')
        A('  s_and_saveexec_b64 s[26:27], vcc')
        A('  v_mov_b32 v126, 0')
        A('  v_mov_b32 v2, 1')
        A('  buffer_atomic_add v2, v126, s[32:35], s28 offen sc0')
        A('  s_waitcnt vmcnt(0)')
        A('  ds_write_b32 v126, v2 offset:24832')
        A('  s_waitcnt lgkmcnt(0)')
        A('  s_mov_b64 exec, s[30:31]')
        A('L_f_noat:')
        A('  s_barrier')
        A('  v_mov_b32 v126, 0')
        A('  ds_read_b32 v2, v126 offset:24832')
        A('  s_waitcnt lgkmcnt(0)')
        A('  v_readfirstlane_b32 s28, v2')
        A('  s_cmp_lg_u32 s28, 31')
        A('  s_cbranch_scc1 L_part_end')
        A('  s_load_dwordx2 s[12:13], s[0:1], 24    ; out')
        A('  s_lshr_b32 s28, s2, 5                  ; head')
        A('  s_mul_i32 s20, s28, 24576')
        A('  s_lshl_b32 s21, s28, 8')
        A('  s_add_u32 s21, s21, %d' % WS_ML)
        A('  v_lshlrev_b32 v1, 2, v0')
        A('  v_mov_b32 v2, 0')
        for i in range(16):
            A('  buffer_load_dwordx4 v[%d:%d], v2, s[16:19], s21 offen offset:%d sc1' % (4+4*i, 7+4*i, 16*i))
        for r in range(32):
            if r > 0 and r % 5 == 0:
                A('  s_add_u32 s20, s20, 3840')
            A('  buffer_load_dword v%d, v1, s[16:19], s20 offen offset:%d sc1' % (68+r, 768*(r % 5)))
        A('  s_waitcnt lgkmcnt(0)')
        A('  s_mov_b32 s14, 12288')
        A('  s_mov_b32 s15, 0x00020000')
        A('  s_waitcnt vmcnt(32)')
        A('  v_max_f32 v3, v4, v6')
        for i in range(2, 32):
            A('  v_max_f32 v3, v3, v%d' % (4+2*i))
        for i in range(32):
            A('  v_sub_f32 v%d, v%d, v3' % (4+2*i, 4+2*i))
        for i in range(32):
            A('  v_exp_f32 v%d, v%d' % (4+2*i, 4+2*i))
        A('  s_nop 0')
        A('  v_mul_f32 v100, v4, v5')
        for i in range(1, 32):
            A('  v_fmac_f32 v100, v%d, v%d' % (4+2*i, 5+2*i))
        A('  s_waitcnt vmcnt(0)')
        A('  v_mul_f32 v101, v4, v68')
        for i in range(1, 32):
            A('  v_fmac_f32 v101, v%d, v%d' % (4+2*i, 68+i))
        A('  v_rcp_f32 v100, v100')
        A('  s_nop 0')
        A('  v_mul_f32 v101, v101, v100')
        A('  v_cvt_pk_bf16_f32 v101, v101, v101')
        A('  v_lshlrev_b32 v1, 1, v0')
        A('  s_mul_i32 s20, s28, 384')
        A('  buffer_store_short v101, v1, s[12:15], s20 offen')
    A('L_part_end:')
    A('  s_endpgm')
    if not FUSED:
        A('.globl attn_comb_kernel')
        A('.p2align 8')
        A('.type attn_comb_kernel,@function')
        A('attn_comb_kernel:')
        A('  s_cmp_ge_u32 s2, 32')
        A('  s_cbranch_scc1 L_comb_end')
        A('  s_load_dwordx2 s[12:13], s[0:1], 24    ; out')
        A('  s_load_dwordx2 s[16:17], s[0:1], 40    ; ws')
        A('  v_cmp_gt_u32 vcc, 192, v0')
        A('  s_and_saveexec_b64 s[26:27], vcc')
        A('  s_cbranch_execz L_comb_end')
        A('  s_waitcnt lgkmcnt(0)')
        A('  s_mov_b32 s14, 12288')
        A('  s_mov_b32 s15, 0x00020000')
        A('  s_mov_b32 s18, %d' % (WS_ML + 8192))
        A('  s_mov_b32 s19, 0x00020000')
        A('  s_mul_i32 s20, s2, 24576')
        A('  s_lshl_b32 s21, s2, 8')
        A('  s_add_u32 s21, s21, %d' % WS_ML)
        A('  v_lshlrev_b32 v1, 2, v0')
        A('  v_mov_b32 v2, 0')
        for i in range(16):
            A('  buffer_load_dwordx4 v[%d:%d], v2, s[16:19], s21 offen offset:%d' % (4+4*i, 7+4*i, 16*i))
        for r in range(32):
            if r > 0 and r % 5 == 0:
                A('  s_add_u32 s20, s20, 3840')
            A('  buffer_load_dword v%d, v1, s[16:19], s20 offen offset:%d' % (68+r, 768*(r % 5)))
        A('  s_waitcnt vmcnt(32)')
        A('  v_max_f32 v3, v4, v6')
        for i in range(2, 32):
            A('  v_max_f32 v3, v3, v%d' % (4+2*i))
        for i in range(32):
            A('  v_sub_f32 v%d, v%d, v3' % (4+2*i, 4+2*i))
        for i in range(32):
            A('  v_exp_f32 v%d, v%d' % (4+2*i, 4+2*i))
        A('  s_nop 0')
        A('  v_mul_f32 v100, v4, v5')
        for i in range(1, 32):
            A('  v_fmac_f32 v100, v%d, v%d' % (4+2*i, 5+2*i))
        A('  s_waitcnt vmcnt(0)')
        A('  v_mul_f32 v101, v4, v68')
        for i in range(1, 32):
            A('  v_fmac_f32 v101, v%d, v%d' % (4+2*i, 68+i))
        A('  v_rcp_f32 v100, v100')
        A('  s_nop 0')
        A('  v_mul_f32 v101, v101, v100')
        A('  v_cvt_pk_bf16_f32 v101, v101, v101')
        A('  v_lshlrev_b32 v1, 1, v0')
        A('  s_mul_i32 s20, s2, 384')
        A('  buffer_store_short v101, v1, s[12:15], s20 offen')
        A('L_comb_end:')
        A('  s_endpgm')
    A('.section .rodata,"a"')
    for name, nv in (((KN, 128),) if FUSED else (('attn_part_kernel', 128), ('attn_comb_kernel', 104))):
        A('.p2align 6')
        A('.amdhsa_kernel %s' % name)
        A('  .amdhsa_next_free_vgpr %d' % nv)
        A('  .amdhsa_next_free_sgpr 40')
        A('  .amdhsa_accum_offset %d' % nv)
        A('  .amdhsa_group_segment_fixed_size 0')
        A('  .amdhsa_kernarg_size 48')
        A('  .amdhsa_user_sgpr_count 2')
        A('  .amdhsa_user_sgpr_kernarg_segment_ptr 1')
        A('  .amdhsa_system_sgpr_workgroup_id_x 1')
        A('.end_amdhsa_kernel')
    open(out, 'w').write('\n'.join(L) + '\n')

gen(sys.argv[1] if len(sys.argv) > 1 else 'standalone__softmax_full_bidir__decode.s')
```

```python
import sys, math, os, struct

D = int(os.environ.get("D", 5))
NT = int(os.environ.get("NT", 1))
STAMP = int(os.environ.get("STAMP", 0))
NST = 32
NW = 16
NWG = 4096 // NW
PPH = NWG // 32
KBYTES = 402653184
WS_ML = 1 << 20
KN = 'standalone__softmax_full_bidir__decode_kernel'
LDS_ML = NW * 768
LDS_FLAG = LDS_ML + 128
LDS_SIZE = LDS_FLAG + 64

def gen(out):
    L = []
    A = L.append
    nt = os.environ.get("POL", " nt" if NT else "")
    hdr = open('standalone__softmax_full_bidir__decode.s.ref').read().split('\n')
    for ln in hdr:
        if ln.startswith('; @launch'):
            break
        A(ln)
    A("; @launch grid=(%d,1,1) block=(%d,1,1) lds=%d" % (NWG, NW*64, LDS_SIZE))
    A('.amdgcn_target "amdgcn-amd-amdhsa--gfx950"')
    A('.text')
    A('.globl %s' % KN)
    A('.p2align 8')
    A('.type %s,@function' % KN)
    A('%s:' % KN)
    A('  s_cmp_ge_u32 s2, %d' % NWG)
    A('  s_cbranch_scc1 L_end')
    if STAMP: A('  s_memrealtime s[44:45]')
    A('  s_load_dwordx2 s[4:5], s[0:1], 0       ; q')
    A('  s_load_dwordx2 s[8:9], s[0:1], 8       ; k')
    A('  s_load_dwordx2 s[12:13], s[0:1], 16    ; v')
    A('  s_load_dwordx2 s[16:17], s[0:1], 40    ; ws')
    A('  v_lshrrev_b32 v2, 6, v0')
    A('  v_and_b32 v3, 63, v0                   ; lane')
    A('  v_readfirstlane_b32 s20, v2')
    A('  v_lshrrev_b32 v2, 3, v3')
    A('  v_and_b32 v3, 7, v3                    ; p = lane&7')
    A('  v_mul_u32_u24 v1, 384, v2')
    A('  v_lshl_add_u32 v1, v3, 4, v1')
    A('  v_lshlrev_b32 v120, 4, v3              ; p*16')
    A('  s_lshl_b32 s21, s2, 4')
    A('  s_add_u32 s21, s21, s20                ; b*16+w')
    A('  s_mul_i32 s22, s21, 98304')
    A('  s_lshr_b32 s23, s2, 3                  ; head')
    A('  s_mul_i32 s23, s23, 384')
    A('  s_waitcnt lgkmcnt(0)')
    A('  s_mov_b32 s6, 12288')
    A('  s_mov_b32 s7, 0x00020000')
    A('  s_mov_b32 s10, %d' % KBYTES)
    A('  s_mov_b32 s11, 0x00020000')
    A('  s_mov_b32 s14, %d' % KBYTES)
    A('  s_mov_b32 s15, 0x00020000')
    A('  s_mov_b32 s18, %d' % ((4 << 20) if STAMP else (WS_ML + 8192)))
    A('  s_mov_b32 s19, 0x00020000')
    for j in range(3):
        A('  buffer_load_dwordx4 v[%d:%d], v120, s[4:7], s23 offen offset:%d' % (4+4*j, 7+4*j, 128*j))
    SC = 28
    BUF = 60
    def bufreg(stage):
        return BUF + 12*(stage % D)
    A('  s_mov_b32 s24, s22')
    def issue(stage):
        srd = 's[8:11]' if stage < NST else 's[12:15]'
        if stage == NST:
            A('  s_mov_b32 s24, s22')
        b = bufreg(stage)
        for j in range(3):
            A('  buffer_load_dwordx4 v[%d:%d], v1, %s, s24 offen offset:%d%s' % (b+4*j, b+4*j+3, srd, 128*j, nt))
        A('  s_add_u32 s24, s24, 3072')
    def xreduce(regs, op, tmp):
        for r in regs:
            A('  %s_dpp v%d, v%d, v%d row_ror:8 row_mask:0xf bank_mask:0xf' % (op, r, r, r))
        for sw in ('v_permlane16_swap_b32', 'v_permlane32_swap_b32'):
            for i, r in enumerate(regs):
                t = tmp[i % len(tmp)]
                A('  v_mov_b32 v%d, v%d' % (t, r))
                A('  s_nop 1')
                A('  %s v%d, v%d' % (sw, r, t))
                A('  s_nop 1')
                A('  %s v%d, v%d, v%d' % (op, r, r, t))
    for st in range(D):
        issue(st)
    total = 2*NST
    for st in range(total):
        remaining = min(total-1, st+D-1) - st
        A('  s_waitcnt vmcnt(%d)' % (3*remaining))
        b = bufreg(st)
        if st < NST:
            s = SC + st
            A('  v_mov_b32 v%d, 0' % s)
            for k in range(12):
                A('  v_dot2c_f32_bf16 v%d, v%d, v%d' % (s, b+k, 4+k))
            if st == NST-1:
                for mode in ('quad_perm:[1,0,3,2]', 'quad_perm:[2,3,0,1]', 'row_half_mirror'):
                    for i in range(NST):
                        A('  v_add_f32_dpp v%d, v%d, v%d %s row_mask:0xf bank_mask:0xf' % (SC+i, SC+i, SC+i, mode))
                c = (192 ** -0.5) * math.log2(math.e)
                cb = struct.unpack('<I', struct.pack('<f', c))[0]
                A('  s_mov_b32 s25, 0x%08x' % cb)
                for i in range(NST):
                    A('  v_mul_f32 v%d, s25, v%d' % (SC+i, SC+i))
                A('  v_max3_f32 v121, v%d, v%d, v%d' % (SC, SC+1, SC+2))
                i = 3
                while i < NST:
                    if i+1 < NST:
                        A('  v_max3_f32 v121, v121, v%d, v%d' % (SC+i, SC+i+1)); i += 2
                    else:
                        A('  v_max_f32 v121, v121, v%d' % (SC+i)); i += 1
                A('  s_nop 1')
                xreduce([121], 'v_max_f32', [123])
                for i in range(NST):
                    A('  v_sub_f32 v%d, v%d, v121' % (SC+i, SC+i))
                for i in range(NST):
                    A('  v_exp_f32 v%d, v%d' % (SC+i, SC+i))
                A('  s_nop 0')
                A('  v_add_f32 v122, v%d, v%d' % (SC, SC+1))
                for i in range(2, NST):
                    A('  v_add_f32 v122, v122, v%d' % (SC+i))
                for i in range(24):
                    A('  v_mov_b32 v%d, 0' % (4+i))
        else:
            g = st - NST
            p = SC + g
            for k in range(12):
                t0 = 123 + 2*(k % 2)
                A('  v_lshlrev_b32 v%d, 16, v%d' % (t0, b+k))
                A('  v_and_b32 v%d, 0xffff0000, v%d' % (t0+1, b+k))
                A('  v_fmac_f32 v%d, v%d, v%d' % (4+2*k, p, t0))
                A('  v_fmac_f32 v%d, v%d, v%d' % (4+2*k+1, p, t0+1))
        if st + D < total:
            issue(st + D)
    if STAMP: A('  s_memrealtime s[36:37]')
    A('  s_nop 1')
    xreduce([122] + list(range(4, 28)), 'v_add_f32', [123, 124, 125, 126])
    A('  v_and_b32 v3, 63, v0')
    A('  v_lshlrev_b32 v126, 5, v3              ; p*32 (lanes 0..7)')
    A('  s_mul_i32 s26, s20, 768')
    A('  v_add_u32 v126, s26, v126')
    A('  s_lshl_b32 s26, s20, 2')
    A('  v_mov_b32 v127, s26')
    A('  v_cmp_gt_u32 vcc, 8, v3')
    A('  s_and_saveexec_b64 s[30:31], vcc')
    for j in range(3):
        A('  ds_write_b128 v126, v[%d:%d] offset:%d' % (4+8*j, 7+8*j, 256*j))
        A('  ds_write_b128 v126, v[%d:%d] offset:%d' % (8+8*j, 11+8*j, 256*j+16))
    A('  ds_write_b32 v127, v121 offset:%d' % LDS_ML)
    A('  ds_write_b32 v127, v122 offset:%d' % (LDS_ML+64))
    A('  s_mov_b64 exec, s[30:31]')
    A('  s_waitcnt lgkmcnt(0)')
    A('  s_barrier')
    A('  s_cmp_ge_u32 s20, 3')
    A('  s_cbranch_scc1 L_end')
    A('  v_lshlrev_b32 v126, 2, v0')
    A('  v_mov_b32 v127, 0')
    for i in range(8):
        A('  ds_read_b128 v[%d:%d], v127 offset:%d' % (60+4*i, 63+4*i, LDS_ML+16*i))
    for r in range(NW):
        A('  ds_read_b32 v%d, v126 offset:%d' % (92+r, 768*r))
    A('  s_waitcnt lgkmcnt(0)')
    A('  v_max3_f32 v125, v60, v61, v62')
    i = 63
    while i < 76:
        if i+1 < 76:
            A('  v_max3_f32 v125, v125, v%d, v%d' % (i, i+1)); i += 2
        else:
            A('  v_max_f32 v125, v125, v%d' % i); i += 1
    for i in range(NW):
        A('  v_sub_f32 v%d, v%d, v125' % (60+i, 60+i))
    for i in range(NW):
        A('  v_exp_f32 v%d, v%d' % (60+i, 60+i))
    A('  s_nop 0')
    A('  v_mul_f32 v3, v60, v76')
    for i in range(1, NW):
        A('  v_fmac_f32 v3, v%d, v%d' % (60+i, 76+i))
    A('  v_mul_f32 v4, v60, v92')
    for i in range(1, NW):
        A('  v_fmac_f32 v4, v%d, v%d' % (60+i, 92+i))
    A('  v_mov_b32 v2, v125')
    A('  s_mul_i32 s28, s2, 768')
    A('  buffer_store_dword v4, v126, s[16:19], s28 offen sc1')
    A('  v_cmp_eq_u32 vcc, 0, v0')
    A('  s_and_saveexec_b64 s[30:31], vcc')
    A('  s_cbranch_execz L_nost')
    A('  s_lshl_b32 s28, s2, 3')
    A('  s_add_u32 s28, s28, %d' % WS_ML)
    A('  buffer_store_dwordx2 v[2:3], v127, s[16:19], s28 offen sc1')
    A('L_nost:')
    A('  s_mov_b64 exec, s[30:31]')
    A('  s_load_dwordx2 s[32:33], s[0:1], 32')
    A('  s_load_dwordx2 s[12:13], s[0:1], 24    ; out')
    A('  s_waitcnt vmcnt(0)')
    A('  s_barrier')
    if STAMP: A('  s_memrealtime s[38:39]')
    A('  s_waitcnt lgkmcnt(0)')
    A('  s_cmp_lg_u32 s20, 0')
    A('  s_cbranch_scc1 L_noat')
    A('  s_mov_b32 s34, 256')
    A('  s_mov_b32 s35, 0x00020000')
    A('  s_lshr_b32 s28, s2, 3')
    A('  s_lshl_b32 s28, s28, 2')
    A('  v_cmp_eq_u32 vcc, 0, v0')
    A('  s_and_saveexec_b64 s[30:31], vcc')
    A('  v_mov_b32 v2, 1')
    A('  buffer_atomic_add v2, v127, s[32:35], s28 offen sc0')
    A('  s_waitcnt vmcnt(0)')
    A('  ds_write_b32 v127, v2 offset:%d' % LDS_FLAG)
    A('  s_waitcnt lgkmcnt(0)')
    A('  s_mov_b64 exec, s[30:31]')
    A('L_noat:')
    A('  s_barrier')
    A('  ds_read_b32 v2, v127 offset:%d' % LDS_FLAG)
    A('  s_waitcnt lgkmcnt(0)')
    A('  v_readfirstlane_b32 s28, v2')
    if STAMP:
        A('  s_memrealtime s[40:41]')
        A('  s_mov_b64 s[42:43], 0')
    A('  s_cmp_lg_u32 s28, %d' % (PPH-1))
    A('  s_cbranch_scc1 %s' % ('L_stamp' if STAMP else 'L_end'))
    A('  s_lshr_b32 s28, s2, 3                  ; head')
    A('  s_mul_i32 s20, s28, %d' % (PPH*768))
    A('  s_lshl_b32 s21, s28, 6')
    A('  s_add_u32 s21, s21, %d' % WS_ML)
    for i in range(PPH//2):
        A('  buffer_load_dwordx4 v[%d:%d], v127, s[16:19], s21 offen offset:%d sc1' % (4+4*i, 7+4*i, 16*i))
    for r in range(PPH):
        if r > 0 and r % 5 == 0:
            A('  s_add_u32 s20, s20, 3840')
        A('  buffer_load_dword v%d, v126, s[16:19], s20 offen offset:%d sc1' % (68+r, 768*(r % 5)))
    A('  s_mov_b32 s14, 12288')
    A('  s_mov_b32 s15, 0x00020000')
    A('  s_waitcnt vmcnt(%d)' % PPH)
    A('  v_max_f32 v3, v4, v6')
    for i in range(2, PPH):
        A('  v_max_f32 v3, v3, v%d' % (4+2*i))
    for i in range(PPH):
        A('  v_sub_f32 v%d, v%d, v3' % (4+2*i, 4+2*i))
    for i in range(PPH):
        A('  v_exp_f32 v%d, v%d' % (4+2*i, 4+2*i))
    A('  s_nop 0')
    A('  v_mul_f32 v100, v4, v5')
    for i in range(1, PPH):
        A('  v_fmac_f32 v100, v%d, v%d' % (4+2*i, 5+2*i))
    A('  s_waitcnt vmcnt(0)')
    A('  v_mul_f32 v101, v4, v68')
    for i in range(1, PPH):
        A('  v_fmac_f32 v101, v%d, v%d' % (4+2*i, 68+i))
    A('  v_rcp_f32 v100, v100')
    A('  s_nop 0')
    A('  v_mul_f32 v101, v101, v100')
    A('  v_cvt_pk_bf16_f32 v101, v101, v101')
    A('  v_lshlrev_b32 v1, 1, v0')
    A('  s_mul_i32 s20, s28, 384')
    A('  buffer_store_short v101, v1, s[12:15], s20 offen')
    if STAMP:
        A('  s_waitcnt vmcnt(0)')
        A('  s_memrealtime s[42:43]')
        A('L_stamp:')
        A('  s_waitcnt lgkmcnt(0)')
        A('  v_cmp_eq_u32 vcc, 0, v0')
        A('  s_and_saveexec_b64 s[26:27], vcc')
        A('  s_cbranch_execz L_end')
        for i in range(10):
            A('  v_mov_b32 v%d, s%d' % (4+i, (44+i) if i < 2 else 34+i))
        A('  s_lshl_b32 s28, s2, 6')
        A('  s_add_u32 s28, s28, %d' % (2 << 20))
        A('  buffer_store_dwordx4 v[4:7], v127, s[16:19], s28 offen')
        A('  buffer_store_dwordx4 v[8:11], v127, s[16:19], s28 offen offset:16')
        A('  buffer_store_dwordx2 v[12:13], v127, s[16:19], s28 offen offset:32')
    A('L_end:')
    A('  s_endpgm')
    A('.section .rodata,"a"')
    A('.p2align 6')
    A('.amdhsa_kernel %s' % KN)
    A('  .amdhsa_next_free_vgpr 128')
    A('  .amdhsa_next_free_sgpr 48')
    A('  .amdhsa_accum_offset 128')
    A('  .amdhsa_group_segment_fixed_size 0')
    A('  .amdhsa_kernarg_size 48')
    A('  .amdhsa_user_sgpr_count 2')
    A('  .amdhsa_user_sgpr_kernarg_segment_ptr 1')
    A('  .amdhsa_system_sgpr_workgroup_id_x 1')
    A('.end_amdhsa_kernel')
    open(out, 'w').write('\n'.join(L) + '\n')

gen(sys.argv[1])
```

```python
import sys, math

D = int(__import__("os").environ.get("D", 5))
NT = int(__import__("os").environ.get("NT", 1))
SWEEP = int(__import__('os').environ.get('SWEEP', 0))
STAMP = int(__import__('os').environ.get('STAMP', 0))
FUSED = int(__import__('os').environ.get('FUSED', 0))
NST = 32

KBYTES = 402653184
WS_O = 0
WS_ML = 1 << 20

def gen(out):
    L = []
    A = L.append
    nt = " nt" if NT else ""
    hdr = open('standalone__softmax_full_bidir__decode.s.ref').read().split('\n')
    for ln in hdr:
        if ln.startswith('; @launch'):
            break
        A(ln)
    KN = 'standalone__softmax_full_bidir__decode_kernel' if FUSED else 'attn_part_kernel'
    if FUSED:
        A("; @launch grid=(1024,1,1) block=(256,1,1) lds=25088")
    else:
        A("; @launch kernel=attn_part_kernel grid=(1024,1,1) block=(256,1,1) lds=25088")
        A("; @launch kernel=attn_comb_kernel grid=(32,1,1) block=(256,1,1) lds=0")
    A('.amdgcn_target "amdgcn-amd-amdhsa--gfx950"')
    A('.text')
    A('.globl %s' % KN)
    A('.p2align 8')
    A('.type %s,@function' % KN)
    A('%s:' % KN)
    A('  s_cmp_ge_u32 s2, 1024')
    A('  s_cbranch_scc1 L_part_end')
    if STAMP: A('  s_memrealtime s[44:45]' if FUSED else '  s_memrealtime s[34:35]')
    A('  s_load_dwordx2 s[4:5], s[0:1], 0       ; q')
    A('  s_load_dwordx2 s[8:9], s[0:1], 8       ; k')
    A('  s_load_dwordx2 s[12:13], s[0:1], 16    ; v')
    A('  s_load_dwordx2 s[16:17], s[0:1], 40    ; ws')
    A('  v_lshrrev_b32 v2, 6, v0')
    A('  v_and_b32 v3, 63, v0                   ; lane')
    A('  v_readfirstlane_b32 s20, v2')
    A('  v_lshrrev_b32 v2, 3, v3')
    A('  v_and_b32 v3, 7, v3                    ; p = lane&7')
    A('  v_mul_u32_u24 v1, 384, v2')
    A('  v_lshl_add_u32 v1, v3, 4, v1')
    A('  s_lshl_b32 s21, s2, 2')
    A('  s_add_u32 s21, s21, s20                ; b*4+w')
    if SWEEP:
        A('  s_and_b32 s21, s21, 127')
        A('  s_mul_i32 s22, s21, 3072')
        A('  s_lshr_b32 s21, s2, 5')
        A('  s_mul_i32 s21, s21, 12582912')
        A('  s_add_u32 s22, s22, s21')
    else:
        A('  s_mul_i32 s22, s21, 98304')
    A('  s_lshr_b32 s23, s2, 5                  ; head')
    A('  s_mul_i32 s23, s23, 384')
    A('  v_lshlrev_b32 v120, 4, v3              ; p*16')
    A('  s_waitcnt lgkmcnt(0)')
    A('  s_mov_b32 s6, 12288')
    A('  s_mov_b32 s7, 0x00020000')
    A('  s_mov_b32 s10, %d' % KBYTES)
    A('  s_mov_b32 s11, 0x00020000')
    A('  s_mov_b32 s14, %d' % KBYTES)
    A('  s_mov_b32 s15, 0x00020000')
    A('  s_mov_b32 s18, %d' % ((4<<20) if STAMP else (WS_ML + 8192)))
    A('  s_mov_b32 s19, 0x00020000')
    for j in range(3):
        A('  buffer_load_dwordx4 v[%d:%d], v120, s[4:7], s23 offen offset:%d' % (4+4*j, 7+4*j, 128*j))
    SC = 28
    BUF = 60
    def bufreg(stage):
        return BUF + 12*(stage % D)
    A('  s_mov_b32 s24, s22')
    def issue(stage):
        srd = 's[8:11]' if stage < NST else 's[12:15]'
        if stage == NST:
            A('  s_mov_b32 s24, s22')
        b = bufreg(stage)
        for j in range(3):
            A('  buffer_load_dwordx4 v[%d:%d], v1, %s, s24 offen offset:%d%s' % (b+4*j, b+4*j+3, srd, 128*j, nt))
        A('  s_add_u32 s24, s24, %d' % (393216 if SWEEP else 3072))
    for st in range(D):
        issue(st)
    total = 2*NST
    for st in range(total):
        remaining = min(total-1, st+D-1) - st
        A('  s_waitcnt vmcnt(%d)' % (3*remaining))
        b = bufreg(st)
        if st < NST:
            s = SC + st
            A('  v_mov_b32 v%d, 0' % s)
            for k in range(12):
                A('  v_dot2c_f32_bf16 v%d, v%d, v%d' % (s, b+k, 4+k))
            if st == NST-1:
                for mode in ('quad_perm:[1,0,3,2]', 'quad_perm:[2,3,0,1]', 'row_half_mirror'):
                    for i in range(NST):
                        A('  v_add_f32_dpp v%d, v%d, v%d %s row_mask:0xf bank_mask:0xf' % (SC+i, SC+i, SC+i, mode))
                c = (192 ** -0.5) * math.log2(math.e)
                import struct
                cb = struct.unpack('<I', struct.pack('<f', c))[0]
                A('  s_mov_b32 s25, 0x%08x' % cb)
                for i in range(NST):
                    A('  v_mul_f32 v%d, s25, v%d' % (SC+i, SC+i))
                A('  v_max3_f32 v121, v%d, v%d, v%d' % (SC, SC+1, SC+2))
                i = 3
                while i < NST:
                    if i+1 < NST:
                        A('  v_max3_f32 v121, v121, v%d, v%d' % (SC+i, SC+i+1)); i += 2
                    else:
                        A('  v_max_f32 v121, v121, v%d' % (SC+i)); i += 1
                for i in range(NST):
                    A('  v_sub_f32 v%d, v%d, v121' % (SC+i, SC+i))
                for i in range(NST):
                    A('  v_exp_f32 v%d, v%d' % (SC+i, SC+i))
                A('  s_nop 0')
                A('  v_add_f32 v122, v%d, v%d' % (SC, SC+1))
                for i in range(2, NST):
                    A('  v_add_f32 v122, v122, v%d' % (SC+i))
                for i in range(24):
                    A('  v_mov_b32 v%d, 0' % (4+i))
        else:
            g = st - NST
            p = SC + g
            for k in range(12):
                t0 = 123 + 2*(k % 2)
                A('  v_lshlrev_b32 v%d, 16, v%d' % (t0, b+k))
                A('  v_and_b32 v%d, 0xffff0000, v%d' % (t0+1, b+k))
                A('  v_fmac_f32 v%d, v%d, v%d' % (4+2*k, p, t0))
                A('  v_fmac_f32 v%d, v%d, v%d' % (4+2*k+1, p, t0+1))
        if st + D < total:
            issue(st + D)
    if STAMP and FUSED: A('  s_memrealtime s[36:37]')
    A('  v_lshrrev_b32 v2, 3, v0')
    A('  v_lshlrev_b32 v127, 2, v2')
    A('  ds_write_b32 v127, v121 offset:24576')
    A('  s_waitcnt lgkmcnt(0)')
    A('  s_barrier')
    A('  v_mov_b32 v126, 0')
    for i in range(8):
        A('  ds_read_b128 v[%d:%d], v126 offset:%d' % (60+4*i, 63+4*i, 24576+16*i))
    A('  s_waitcnt lgkmcnt(0)')
    A('  v_max3_f32 v125, v60, v61, v62')
    i = 63
    while i < 92:
        if i+1 < 92:
            A('  v_max3_f32 v125, v125, v%d, v%d' % (i, i+1)); i += 2
        else:
            A('  v_max_f32 v125, v125, v%d' % i); i += 1
    A('  v_sub_f32 v124, v121, v125             ; m_slot - M')
    A('  v_exp_f32 v124, v124')
    A('  s_nop 0')
    for i in range(24):
        A('  v_mul_f32 v%d, v124, v%d' % (4+i, 4+i))
    A('  v_mul_f32 v122, v124, v122')
    A('  v_mul_u32_u24 v126, 768, v2')
    A('  v_and_b32 v3, 7, v0')
    A('  v_lshl_add_u32 v126, v3, 5, v126')
    for j in range(3):
        A('  ds_write_b128 v126, v[%d:%d] offset:%d' % (4+8*j, 7+8*j, 256*j))
        A('  ds_write_b128 v126, v[%d:%d] offset:%d' % (8+8*j, 11+8*j, 256*j+16))
    A('  ds_write_b32 v127, v122 offset:24704')
    A('  s_waitcnt lgkmcnt(0)')
    A('  s_barrier')
    A('  v_cmp_gt_u32 vcc, 192, v0')
    A('  s_and_saveexec_b64 s[26:27], vcc')
    A('  s_cbranch_execz L_part_end')
    A('  v_lshlrev_b32 v126, 2, v0')
    for r in range(32):
        A('  ds_read_b32 v%d, v126 offset:%d' % (60+r, 768*r))
    A('  v_mov_b32 v127, 0')
    for i in range(8):
        A('  ds_read_b128 v[%d:%d], v127 offset:%d' % (92+4*i, 95+4*i, 24704+16*i))
    A('  s_waitcnt lgkmcnt(0)')
    for r in range(1, 32):
        A('  v_add_f32 v60, v60, v%d' % (60+r))
    for r in range(1, 32):
        A('  v_add_f32 v92, v92, v%d' % (92+r))
    if not FUSED:
        A('  s_mul_i32 s28, s2, 768')
        A('  buffer_store_dword v60, v126, s[16:19], s28 offen')
        A('  v_mov_b32 v2, v125')
        A('  v_mov_b32 v3, v92')
        A('  v_cmp_eq_u32 vcc, 0, v0')
        A('  s_and_saveexec_b64 s[26:27], vcc')
        A('  s_cbranch_execz L_part_end')
        A('  s_lshl_b32 s28, s2, 3')
        A('  s_add_u32 s28, s28, %d' % WS_ML)
        A('  v_mov_b32 v126, 0')
        A('  buffer_store_dwordx2 v[2:3], v126, s[16:19], s28 offen')
        if STAMP:
            A('  s_memrealtime s[36:37]')
            A('  s_waitcnt lgkmcnt(0)')
            A('  v_mov_b32 v4, s34')
            A('  v_mov_b32 v5, s35')
            A('  v_mov_b32 v6, s36')
            A('  v_mov_b32 v7, s37')
            A('  s_lshl_b32 s28, s2, 4')
            A('  s_add_u32 s28, s28, %d' % (2<<20))
            A('  buffer_store_dwordx4 v[4:7], v126, s[16:19], s28 offen')
    else:
        A('  s_mul_i32 s28, s2, 768')
        A('  buffer_store_dword v60, v126, s[16:19], s28 offen sc1')
        A('  v_mov_b32 v2, v125')
        A('  v_mov_b32 v3, v92')
        A('  s_mov_b64 s[30:31], exec')
        A('  v_cmp_eq_u32 vcc, 0, v0')
        A('  s_and_saveexec_b64 s[26:27], vcc')
        A('  s_cbranch_execz L_f_nost')
        A('  s_lshl_b32 s28, s2, 3')
        A('  s_add_u32 s28, s28, %d' % WS_ML)
        A('  v_mov_b32 v126, 0')
        A('  buffer_store_dwordx2 v[2:3], v126, s[16:19], s28 offen sc1')
        A('L_f_nost:')
        A('  s_mov_b64 exec, s[30:31]')
        A('  s_waitcnt vmcnt(0)')
        A('  s_barrier')
        if STAMP: A('  s_memrealtime s[38:39]')
        A('  s_cmp_lg_u32 s20, 0')
        A('  s_cbranch_scc1 L_f_noat')
        A('  s_load_dwordx2 s[32:33], s[0:1], 32')
        A('  s_waitcnt lgkmcnt(0)')
        A('  s_mov_b32 s34, 256')
        A('  s_mov_b32 s35, 0x00020000')
        A('  s_lshr_b32 s28, s2, 5')
        A('  s_lshl_b32 s28, s28, 2')
        A('  v_cmp_eq_u32 vcc, 0, v0')
        A('  s_and_saveexec_b64 s[26:27], vcc')
        A('  v_mov_b32 v126, 0')
        A('  v_mov_b32 v2, 1')
        A('  buffer_atomic_add v2, v126, s[32:35], s28 offen sc0')
        A('  s_waitcnt vmcnt(0)')
        A('  ds_write_b32 v126, v2 offset:24832')
        A('  s_waitcnt lgkmcnt(0)')
        A('  s_mov_b64 exec, s[30:31]')
        A('L_f_noat:')
        A('  s_barrier')
        A('  v_mov_b32 v126, 0')
        A('  ds_read_b32 v2, v126 offset:24832')
        A('  s_waitcnt lgkmcnt(0)')
        A('  v_readfirstlane_b32 s28, v2')
        if STAMP:
            A('  s_memrealtime s[40:41]')
            A('  s_mov_b64 s[42:43], 0')
            A('  s_cmp_lg_u32 s28, 31')
            A('  s_cbranch_scc1 L_f_stamp')
        else:
            A('  s_cmp_lg_u32 s28, 31')
            A('  s_cbranch_scc1 L_part_end')
        A('  s_load_dwordx2 s[12:13], s[0:1], 24    ; out')
        A('  s_lshr_b32 s28, s2, 5                  ; head')
        A('  s_mul_i32 s20, s28, 24576')
        A('  s_lshl_b32 s21, s28, 8')
        A('  s_add_u32 s21, s21, %d' % WS_ML)
        A('  v_lshlrev_b32 v1, 2, v0')
        A('  v_mov_b32 v2, 0')
        for i in range(16):
            A('  buffer_load_dwordx4 v[%d:%d], v2, s[16:19], s21 offen offset:%d sc1' % (4+4*i, 7+4*i, 16*i))
        for r in range(32):
            if r > 0 and r % 5 == 0:
                A('  s_add_u32 s20, s20, 3840')
            A('  buffer_load_dword v%d, v1, s[16:19], s20 offen offset:%d sc1' % (68+r, 768*(r % 5)))
        A('  s_waitcnt lgkmcnt(0)')
        A('  s_mov_b32 s14, 12288')
        A('  s_mov_b32 s15, 0x00020000')
        A('  s_waitcnt vmcnt(32)')
        A('  v_max_f32 v3, v4, v6')
        for i in range(2, 32):
            A('  v_max_f32 v3, v3, v%d' % (4+2*i))
        for i in range(32):
            A('  v_sub_f32 v%d, v%d, v3' % (4+2*i, 4+2*i))
        for i in range(32):
            A('  v_exp_f32 v%d, v%d' % (4+2*i, 4+2*i))
        A('  s_nop 0')
        A('  v_mul_f32 v100, v4, v5')
        for i in range(1, 32):
            A('  v_fmac_f32 v100, v%d, v%d' % (4+2*i, 5+2*i))
        A('  s_waitcnt vmcnt(0)')
        A('  v_mul_f32 v101, v4, v68')
        for i in range(1, 32):
            A('  v_fmac_f32 v101, v%d, v%d' % (4+2*i, 68+i))
        A('  v_rcp_f32 v100, v100')
        A('  s_nop 0')
        A('  v_mul_f32 v101, v101, v100')
        A('  v_cvt_pk_bf16_f32 v101, v101, v101')
        A('  v_lshlrev_b32 v1, 1, v0')
        A('  s_mul_i32 s20, s28, 384')
        A('  buffer_store_short v101, v1, s[12:15], s20 offen')
        if STAMP:
            A('  s_waitcnt vmcnt(0)')
            A('  s_memrealtime s[42:43]')
            A('L_f_stamp:')
            A('  s_waitcnt lgkmcnt(0)')
            A('  v_cmp_eq_u32 vcc, 0, v0')
            A('  s_and_saveexec_b64 s[26:27], vcc')
            A('  s_cbranch_execz L_part_end')
            for i in range(10):
                A('  v_mov_b32 v%d, s%d' % (4+i, (44+i) if i < 2 else 34+i))
            A('  s_lshl_b32 s28, s2, 6')
            A('  s_add_u32 s28, s28, %d' % (2<<20))
            A('  v_mov_b32 v126, 0')
            A('  buffer_store_dwordx4 v[4:7], v126, s[16:19], s28 offen')
            A('  buffer_store_dwordx4 v[8:11], v126, s[16:19], s28 offen offset:16')
            A('  buffer_store_dwordx2 v[12:13], v126, s[16:19], s28 offen offset:32')
    A('L_part_end:')
    A('  s_endpgm')
    if not FUSED:
        A('.globl attn_comb_kernel')
        A('.p2align 8')
        A('.type attn_comb_kernel,@function')
        A('attn_comb_kernel:')
        A('  s_cmp_ge_u32 s2, 32')
        A('  s_cbranch_scc1 L_comb_end')
        A('  s_load_dwordx2 s[12:13], s[0:1], 24    ; out')
        A('  s_load_dwordx2 s[16:17], s[0:1], 40    ; ws')
        A('  v_cmp_gt_u32 vcc, 192, v0')
        A('  s_and_saveexec_b64 s[26:27], vcc')
        A('  s_cbranch_execz L_comb_end')
        A('  s_waitcnt lgkmcnt(0)')
        A('  s_mov_b32 s14, 12288')
        A('  s_mov_b32 s15, 0x00020000')
        A('  s_mov_b32 s18, %d' % (WS_ML + 8192))
        A('  s_mov_b32 s19, 0x00020000')
        A('  s_mul_i32 s20, s2, 24576')
        A('  s_lshl_b32 s21, s2, 8')
        A('  s_add_u32 s21, s21, %d' % WS_ML)
        A('  v_lshlrev_b32 v1, 2, v0')
        A('  v_mov_b32 v2, 0')
        for i in range(16):
            A('  buffer_load_dwordx4 v[%d:%d], v2, s[16:19], s21 offen offset:%d' % (4+4*i, 7+4*i, 16*i))
        for r in range(32):
            if r > 0 and r % 5 == 0:
                A('  s_add_u32 s20, s20, 3840')
            A('  buffer_load_dword v%d, v1, s[16:19], s20 offen offset:%d' % (68+r, 768*(r % 5)))
        A('  s_waitcnt vmcnt(32)')
        A('  v_max_f32 v3, v4, v6')
        for i in range(2, 32):
            A('  v_max_f32 v3, v3, v%d' % (4+2*i))
        for i in range(32):
            A('  v_sub_f32 v%d, v%d, v3' % (4+2*i, 4+2*i))
        for i in range(32):
            A('  v_exp_f32 v%d, v%d' % (4+2*i, 4+2*i))
        A('  s_nop 0')
        A('  v_mul_f32 v100, v4, v5')
        for i in range(1, 32):
            A('  v_fmac_f32 v100, v%d, v%d' % (4+2*i, 5+2*i))
        A('  s_waitcnt vmcnt(0)')
        A('  v_mul_f32 v101, v4, v68')
        for i in range(1, 32):
            A('  v_fmac_f32 v101, v%d, v%d' % (4+2*i, 68+i))
        A('  v_rcp_f32 v100, v100')
        A('  s_nop 0')
        A('  v_mul_f32 v101, v101, v100')
        A('  v_cvt_pk_bf16_f32 v101, v101, v101')
        A('  v_lshlrev_b32 v1, 1, v0')
        A('  s_mul_i32 s20, s2, 384')
        A('  buffer_store_short v101, v1, s[12:15], s20 offen')
        A('L_comb_end:')
        A('  s_endpgm')
    A('.section .rodata,"a"')
    for name, nv in (((KN, 128),) if FUSED else (('attn_part_kernel', 128), ('attn_comb_kernel', 104))):
        A('.p2align 6')
        A('.amdhsa_kernel %s' % name)
        A('  .amdhsa_next_free_vgpr %d' % nv)
        A('  .amdhsa_next_free_sgpr 48')
        A('  .amdhsa_accum_offset %d' % nv)
        A('  .amdhsa_group_segment_fixed_size 0')
        A('  .amdhsa_kernarg_size 48')
        A('  .amdhsa_user_sgpr_count 2')
        A('  .amdhsa_user_sgpr_kernarg_segment_ptr 1')
        A('  .amdhsa_system_sgpr_workgroup_id_x 1')
        A('.end_amdhsa_kernel')
    open(out, 'w').write('\n'.join(L) + '\n')

gen(sys.argv[1] if len(sys.argv) > 1 else 'standalone__softmax_full_bidir__decode.s')
```

```python
import sys, math, os, struct

D = int(os.environ.get("D", 5))
NT = int(os.environ.get("NT", 1))
STAMP = int(os.environ.get("STAMP", 0))
NST = int(os.environ.get('NST', 32))
NW = 16 * 32 // NST
NWG = (4096 * 32 // NST) // NW
PPH = NWG // 32
KBYTES = 402653184
WS_ML = 1 << 20
KN = 'standalone__softmax_full_bidir__decode_kernel'
LDS_ML = NW * 768
LDS_FLAG = LDS_ML + 128
LDS_SIZE = LDS_FLAG + 64

def gen(out):
    L = []
    A = L.append
    nt = os.environ.get("POL", " nt" if NT else "")
    hdr = open('standalone__softmax_full_bidir__decode.s.ref').read().split('\n')
    for ln in hdr:
        if ln.startswith('; @launch'):
            break
        A(ln)
    A("; @launch grid=(%d,1,1) block=(%d,1,1) lds=%d" % (NWG, NW*64, LDS_SIZE))
    A('.amdgcn_target "amdgcn-amd-amdhsa--gfx950"')
    A('.text')
    A('.globl %s' % KN)
    A('.p2align 8')
    A('.type %s,@function' % KN)
    A('%s:' % KN)
    A('  s_cmp_ge_u32 s2, %d' % NWG)
    A('  s_cbranch_scc1 L_end')
    if STAMP: A('  s_memrealtime s[44:45]')
    A('  s_load_dwordx2 s[4:5], s[0:1], 0       ; q')
    A('  s_load_dwordx2 s[8:9], s[0:1], 8       ; k')
    A('  s_load_dwordx2 s[12:13], s[0:1], 16    ; v')
    A('  s_load_dwordx2 s[16:17], s[0:1], 40    ; ws')
    A('  v_lshrrev_b32 v2, 6, v0')
    A('  v_and_b32 v3, 63, v0                   ; lane')
    A('  v_readfirstlane_b32 s20, v2')
    A('  v_lshrrev_b32 v2, 3, v3')
    A('  v_and_b32 v3, 7, v3                    ; p = lane&7')
    A('  v_mul_u32_u24 v1, 384, v2')
    A('  v_lshl_add_u32 v1, v3, 4, v1')
    A('  v_lshlrev_b32 v1000, 4, v3              ; p*16')
    A('  s_lshl_b32 s21, s2, %d' % int(math.log2(NW)))
    A('  s_add_u32 s21, s21, s20                ; b*16+w')
    A('  s_mul_i32 s22, s21, %d ' % (3072*NST) + '             ; byte base of this wave chunk in K / V')
    A('  s_lshr_b32 s23, s2, 3                  ; head')
    A('  s_mul_i32 s23, s23, 384')
    A('  s_waitcnt lgkmcnt(0)')
    A('  s_mov_b32 s6, 12288')
    A('  s_mov_b32 s7, 0x00020000')
    A('  s_mov_b32 s10, %d' % KBYTES)
    A('  s_mov_b32 s11, 0x00020000')
    A('  s_mov_b32 s14, %d' % KBYTES)
    A('  s_mov_b32 s15, 0x00020000')
    A('  s_mov_b32 s18, %d' % ((4 << 20) if STAMP else (WS_ML + 8192)))
    A('  s_mov_b32 s19, 0x00020000')
    for j in range(3):
        A('  buffer_load_dwordx4 v[%d:%d], v1000, s[4:7], s23 offen offset:%d' % (4+4*j, 7+4*j, 128*j))
    SC = 28
    BUF = SC + NST
    def bufreg(stage):
        return BUF + 12*(stage % D)
    A('  s_mov_b32 s24, s22')
    def issue(stage):
        srd = 's[8:11]' if stage < NST else 's[12:15]'
        if stage == NST:
            A('  s_mov_b32 s24, s22')
        b = bufreg(stage)
        for j in range(3):
            A('  buffer_load_dwordx4 v[%d:%d], v1, %s, s24 offen offset:%d%s' % (b+4*j, b+4*j+3, srd, 128*j, nt))
        A('  s_add_u32 s24, s24, 3072')
    def xreduce(regs, op, tmp):
        for r in regs:
            A('  %s_dpp v%d, v%d, v%d row_ror:8 row_mask:0xf bank_mask:0xf' % (op, r, r, r))
        for sw in ('v_permlane16_swap_b32', 'v_permlane32_swap_b32'):
            for i, r in enumerate(regs):
                t = tmp[i % len(tmp)]
                A('  v_mov_b32 v%d, v%d' % (t, r))
                A('  s_nop 1')
                A('  %s v%d, v%d' % (sw, r, t))
                A('  s_nop 1')
                A('  %s v%d, v%d, v%d' % (op, r, r, t))
    for st in range(D):
        issue(st)
    total = 2*NST
    for st in range(total):
        remaining = min(total-1, st+D-1) - st
        A('  s_waitcnt vmcnt(%d)' % (3*remaining))
        b = bufreg(st)
        if st < NST:
            s = SC + st
            A('  v_mov_b32 v%d, 0' % s)
            for k in range(12):
                A('  v_dot2c_f32_bf16 v%d, v%d, v%d' % (s, b+k, 4+k))
            if st == NST-1:
                for mode in ('quad_perm:[1,0,3,2]', 'quad_perm:[2,3,0,1]', 'row_half_mirror'):
                    for i in range(NST):
                        A('  v_add_f32_dpp v%d, v%d, v%d %s row_mask:0xf bank_mask:0xf' % (SC+i, SC+i, SC+i, mode))
                c = (192 ** -0.5) * math.log2(math.e)
                cb = struct.unpack('<I', struct.pack('<f', c))[0]
                A('  s_mov_b32 s25, 0x%08x' % cb)
                for i in range(NST):
                    A('  v_mul_f32 v%d, s25, v%d' % (SC+i, SC+i))
                A('  v_max3_f32 v1001, v%d, v%d, v%d' % (SC, SC+1, SC+2))
                i = 3
                while i < NST:
                    if i+1 < NST:
                        A('  v_max3_f32 v1001, v1001, v%d, v%d' % (SC+i, SC+i+1)); i += 2
                    else:
                        A('  v_max_f32 v1001, v1001, v%d' % (SC+i)); i += 1
                A('  s_nop 1')
                xreduce([1001], 'v_max_f32', [1003])
                for i in range(NST):
                    A('  v_sub_f32 v%d, v%d, v1001' % (SC+i, SC+i))
                for i in range(NST):
                    A('  v_exp_f32 v%d, v%d' % (SC+i, SC+i))
                A('  s_nop 0')
                A('  v_add_f32 v1002, v%d, v%d' % (SC, SC+1))
                for i in range(2, NST):
                    A('  v_add_f32 v1002, v1002, v%d' % (SC+i))
                for i in range(24):
                    A('  v_mov_b32 v%d, 0' % (4+i))
        else:
            g = st - NST
            p = SC + g
            for k in range(12):
                t0 = 1003 + 2*(k % 2)
                A('  v_lshlrev_b32 v%d, 16, v%d' % (t0, b+k))
                A('  v_and_b32 v%d, 0xffff0000, v%d' % (t0+1, b+k))
                A('  v_fmac_f32 v%d, v%d, v%d' % (4+2*k, p, t0))
                A('  v_fmac_f32 v%d, v%d, v%d' % (4+2*k+1, p, t0+1))
        if st + D < total:
            issue(st + D)
    if STAMP: A('  s_memrealtime s[36:37]')
    A('  s_nop 1')
    xreduce([1002] + list(range(4, 28)), 'v_add_f32', [1003, 1004, 1005, 1006])
    A('  v_and_b32 v3, 63, v0')
    A('  v_lshlrev_b32 v1006, 5, v3              ; p*32 (lanes 0..7)')
    A('  s_mul_i32 s26, s20, 768')
    A('  v_add_u32 v1006, s26, v1006')
    A('  s_lshl_b32 s26, s20, 2')
    A('  v_mov_b32 v1007, s26')
    A('  v_cmp_gt_u32 vcc, 8, v3')
    A('  s_and_saveexec_b64 s[30:31], vcc')
    for j in range(3):
        A('  ds_write_b128 v1006, v[%d:%d] offset:%d' % (4+8*j, 7+8*j, 256*j))
        A('  ds_write_b128 v1006, v[%d:%d] offset:%d' % (8+8*j, 11+8*j, 256*j+16))
    A('  ds_write_b32 v1007, v1001 offset:%d' % LDS_ML)
    A('  ds_write_b32 v1007, v1002 offset:%d' % (LDS_ML+64))
    A('  s_mov_b64 exec, s[30:31]')
    A('  s_waitcnt lgkmcnt(0)')
    A('  s_barrier')
    A('  s_cmp_ge_u32 s20, 3')
    A('  s_cbranch_scc1 L_end')
    A('  v_lshlrev_b32 v1006, 2, v0')
    A('  v_mov_b32 v1007, 0')
    for i in range(8):
        A('  ds_read_b128 v[%d:%d], v1007 offset:%d' % (60+4*i, 63+4*i, LDS_ML+16*i))
    for r in range(NW):
        A('  ds_read_b32 v%d, v1006 offset:%d' % (92+r, 768*r))
    A('  s_waitcnt lgkmcnt(0)')
    A('  v_max3_f32 v1005, v60, v61, v62')
    i = 63
    while i < 60+NW:
        if i+1 < 60+NW:
            A('  v_max3_f32 v1005, v1005, v%d, v%d' % (i, i+1)); i += 2
        else:
            A('  v_max_f32 v1005, v1005, v%d' % i); i += 1
    for i in range(NW):
        A('  v_sub_f32 v%d, v%d, v1005' % (60+i, 60+i))
    for i in range(NW):
        A('  v_exp_f32 v%d, v%d' % (60+i, 60+i))
    A('  s_nop 0')
    A('  v_mul_f32 v3, v60, v76')
    for i in range(1, NW):
        A('  v_fmac_f32 v3, v%d, v%d' % (60+i, 76+i))
    A('  v_mul_f32 v4, v60, v92')
    for i in range(1, NW):
        A('  v_fmac_f32 v4, v%d, v%d' % (60+i, 92+i))
    A('  v_mov_b32 v2, v1005')
    A('  s_mul_i32 s28, s2, 768')
    A('  buffer_store_dword v4, v1006, s[16:19], s28 offen sc1')
    A('  v_cmp_eq_u32 vcc, 0, v0')
    A('  s_and_saveexec_b64 s[30:31], vcc')
    A('  s_cbranch_execz L_nost')
    A('  s_lshl_b32 s28, s2, 3')
    A('  s_add_u32 s28, s28, %d' % WS_ML)
    A('  buffer_store_dwordx2 v[2:3], v1007, s[16:19], s28 offen sc1')
    A('L_nost:')
    A('  s_mov_b64 exec, s[30:31]')
    A('  s_load_dwordx2 s[32:33], s[0:1], 32')
    A('  s_load_dwordx2 s[12:13], s[0:1], 24    ; out')
    A('  s_waitcnt vmcnt(0)')
    A('  s_barrier')
    if STAMP: A('  s_memrealtime s[38:39]')
    A('  s_waitcnt lgkmcnt(0)')
    A('  s_cmp_lg_u32 s20, 0')
    A('  s_cbranch_scc1 L_noat')
    A('  s_mov_b32 s34, 256')
    A('  s_mov_b32 s35, 0x00020000')
    A('  s_lshr_b32 s28, s2, 3')
    A('  s_lshl_b32 s28, s28, 2')
    A('  v_cmp_eq_u32 vcc, 0, v0')
    A('  s_and_saveexec_b64 s[30:31], vcc')
    A('  v_mov_b32 v2, 1')
    A('  buffer_atomic_add v2, v1007, s[32:35], s28 offen sc0')
    A('  s_waitcnt vmcnt(0)')
    A('  ds_write_b32 v1007, v2 offset:%d' % LDS_FLAG)
    A('  s_waitcnt lgkmcnt(0)')
    A('  s_mov_b64 exec, s[30:31]')
    A('L_noat:')
    A('  s_barrier')
    A('  ds_read_b32 v2, v1007 offset:%d' % LDS_FLAG)
    A('  s_waitcnt lgkmcnt(0)')
    A('  v_readfirstlane_b32 s28, v2')
    if STAMP:
        A('  s_memrealtime s[40:41]')
        A('  s_mov_b64 s[42:43], 0')
    A('  s_cmp_lg_u32 s28, %d' % (PPH-1))
    A('  s_cbranch_scc1 %s' % ('L_stamp' if STAMP else 'L_end'))
    A('  s_lshr_b32 s28, s2, 3                  ; head')
    A('  s_mul_i32 s20, s28, %d' % (PPH*768))
    A('  s_lshl_b32 s21, s28, 6')
    A('  s_add_u32 s21, s21, %d' % WS_ML)
    for i in range(PPH//2):
        A('  buffer_load_dwordx4 v[%d:%d], v1007, s[16:19], s21 offen offset:%d sc1' % (4+4*i, 7+4*i, 16*i))
    for r in range(PPH):
        if r > 0 and r % 5 == 0:
            A('  s_add_u32 s20, s20, 3840')
        A('  buffer_load_dword v%d, v1006, s[16:19], s20 offen offset:%d sc1' % (68+r, 768*(r % 5)))
    A('  s_mov_b32 s14, 12288')
    A('  s_mov_b32 s15, 0x00020000')
    A('  s_waitcnt vmcnt(%d)' % PPH)
    A('  v_max_f32 v3, v4, v6')
    for i in range(2, PPH):
        A('  v_max_f32 v3, v3, v%d' % (4+2*i))
    for i in range(PPH):
        A('  v_sub_f32 v%d, v%d, v3' % (4+2*i, 4+2*i))
    for i in range(PPH):
        A('  v_exp_f32 v%d, v%d' % (4+2*i, 4+2*i))
    A('  s_nop 0')
    A('  v_mul_f32 v100, v4, v5')
    for i in range(1, PPH):
        A('  v_fmac_f32 v100, v%d, v%d' % (4+2*i, 5+2*i))
    A('  s_waitcnt vmcnt(0)')
    A('  v_mul_f32 v101, v4, v68')
    for i in range(1, PPH):
        A('  v_fmac_f32 v101, v%d, v%d' % (4+2*i, 68+i))
    A('  v_rcp_f32 v100, v100')
    A('  s_nop 0')
    A('  v_mul_f32 v101, v101, v100')
    A('  v_cvt_pk_bf16_f32 v101, v101, v101')
    A('  v_lshlrev_b32 v1, 1, v0')
    A('  s_mul_i32 s20, s28, 384')
    A('  buffer_store_short v101, v1, s[12:15], s20 offen')
    if STAMP:
        A('  s_waitcnt vmcnt(0)')
        A('  s_memrealtime s[42:43]')
        A('L_stamp:')
        A('  s_waitcnt lgkmcnt(0)')
        A('  v_cmp_eq_u32 vcc, 0, v0')
        A('  s_and_saveexec_b64 s[26:27], vcc')
        A('  s_cbranch_execz L_end')
        for i in range(10):
            A('  v_mov_b32 v%d, s%d' % (4+i, (44+i) if i < 2 else 34+i))
        A('  s_lshl_b32 s28, s2, 6')
        A('  s_add_u32 s28, s28, %d' % (2 << 20))
        A('  buffer_store_dwordx4 v[4:7], v1007, s[16:19], s28 offen')
        A('  buffer_store_dwordx4 v[8:11], v1007, s[16:19], s28 offen offset:16')
        A('  buffer_store_dwordx2 v[12:13], v1007, s[16:19], s28 offen offset:32')
    A('L_end:')
    A('  s_endpgm')
    A('.section .rodata,"a"')
    A('.p2align 6')
    A('.amdhsa_kernel %s' % KN)
    A('  .amdhsa_next_free_vgpr 128')
    A('  .amdhsa_next_free_sgpr 48')
    A('  .amdhsa_accum_offset 128')
    A('  .amdhsa_group_segment_fixed_size 0')
    A('  .amdhsa_kernarg_size 48')
    A('  .amdhsa_user_sgpr_count 2')
    A('  .amdhsa_user_sgpr_kernarg_segment_ptr 1')
    A('  .amdhsa_system_sgpr_workgroup_id_x 1')
    A('.end_amdhsa_kernel')
    TB = BUF + 12*D
    txt = '\n'.join(L) + '\n'
    import re
    txt = re.sub(r'\bv100([0-7])\b', lambda m: 'v%d' % (TB + int(m.group(1))), txt)
    nv = (TB + 8 + 7) // 8 * 8
    txt = txt.replace('.amdhsa_next_free_vgpr 128', '.amdhsa_next_free_vgpr %d' % nv).replace('.amdhsa_accum_offset 128', '.amdhsa_accum_offset %d' % nv)
    open(out, 'w').write(txt)

gen(sys.argv[1])
```
